```python
import torch

def _softmax(x, axis=-1):
    return torch.softmax(x, dim=axis)
def _gelu(x):
    return torch.nn.functional.gelu(x, approximate="tanh")
def _silu(x):
    return torch.nn.functional.silu(x)
def _sigmoid(x):
    return torch.sigmoid(x)
def _layernorm(x, axis=-1, eps=1e-5):
    m = x.mean(dim=axis, keepdim=True)
    v = x.var(dim=axis, keepdim=True, unbiased=False)
    return (x - m) / torch.sqrt(v + eps)
def _scatter_add(tgt, idx, src, axis=0):
    return tgt.clone().index_add_(axis, idx, src)
def _segment_sum(src, seg, n):
    out = torch.zeros((n,) + src.shape[1:], dtype=src.dtype)
    return out.index_add_(0, seg, src)
def _pad(x, pw):
    flat = tuple(v for pair in reversed(pw) for v in pair)
    return torch.nn.functional.pad(x, flat)

kernel_name = 'gated_mix__mha_block__glu_gated_bilinear__prompt'

def setup_inputs():

    _w = (lambda a: (lambda t: t.to(torch.bfloat16) if t.is_floating_point() else t)(torch.as_tensor(a)))
    def _A_setup():
        B, S, D, H = 1, 2048, 640, 32
        return {
            "x": _w((lambda *s: torch.randn(*s, dtype=torch.bfloat16) * 0.05)(B, S, D)),
            "wqkv": _w((lambda *s: torch.randn(*s, dtype=torch.bfloat16) * 0.8)(D, 3 * D)),
            "wo": _w((lambda *s: torch.randn(*s, dtype=torch.bfloat16) * 0.05)(D, D)),
        }
    _A_in = _A_setup()

    def _B_setup():
        B, S, D, F = 1, 2048, 640, 1728
        return {
            "x": _w((lambda *s: torch.randn(*s, dtype=torch.bfloat16) * 0.05)(B, S, D)),
            "w_gate": _w((lambda *s: torch.randn(*s, dtype=torch.bfloat16) * 1.6)(D, F) * (D ** -0.5)),
            "w_up": _w((lambda *s: torch.randn(*s, dtype=torch.bfloat16) * 1.6)(D, F) * (D ** -0.5)),
            "w_down": _w((lambda *s: torch.randn(*s, dtype=torch.bfloat16) * 1.6)(F, D) * (F ** -0.5)),
        }
    _B_in = _B_setup()

    return {
        "A_x": _A_in["x"],
        "A_wqkv": _A_in["wqkv"],
        "A_wo": _A_in["wo"],
        "B_x": _B_in["x"],
        "B_w_gate": _B_in["w_gate"],
        "B_w_up": _B_in["w_up"],
        "B_w_down": _B_in["w_down"],
        "gate_w": _w((lambda *s: torch.randn(*s, dtype=torch.bfloat16) * 0.05)(640) * 16.0),
    }

def reference(A_x, A_wqkv, A_wo, B_x, B_w_gate, B_w_up, B_w_down, gate_w):
    def _A_ref(x, wqkv, wo):
        B, S, D = x.shape
        H = 32
        Dh = D // H
        qkv = (lambda x, *d: x.permute(*d))((x @ wqkv).reshape(B, S, 3, H, Dh), 2, 0, 3, 1, 4)
        q, k, v = qkv[0], qkv[1], qkv[2]
        scores = torch.einsum("bhqd,bhkd->bhqk", q, k) * (Dh ** -0.5)
        p = _softmax(scores, axis=-1)
        o = torch.einsum("bhqk,bhkd->bhqd", p, v)
        return (lambda x, *d: x.permute(*d))(o, 0, 2, 1, 3).reshape(B, S, D) @ wo

    def _B_ref(x, w_gate, w_up, w_down):
        g = torch.einsum("bsd,df->bsf", x, w_gate)
        u = torch.einsum("bsd,df->bsf", x, w_up)
        h = g * u
        return torch.einsum("bsf,fd->bsd", h, w_down)

    x = A_x
    g = _sigmoid((x * gate_w).sum(-1, keepdims=True))
    a = _A_ref(x, A_wqkv, A_wo)
    b = _B_ref(x, B_w_gate, B_w_up, B_w_down)
    return g * a + (1 - g) * b
```

```python
import re

def vr(b, n=1):
    return f"v{b}" if n == 1 else f"v[{b}:{b+n-1}]"
def sr(b, n=1):
    return f"s{b}" if n == 1 else f"s[{b}:{b+n-1}]"

_REG = re.compile(r"\b([vs])(\d+)\b|\b([vs])\[(\d+):(\d+)\]")
def regs_of(tok):
    out = set()
    for m in _REG.finditer(tok):
        if m.group(1): out.add((m.group(1), int(m.group(2))))
        else:
            for i in range(int(m.group(4)), int(m.group(5)) + 1): out.add((m.group(3), i))
    if re.search(r"\bvcc\b", tok): out.add(("s", "vcc"))
    if re.search(r"\bm0\b", tok): out.add(("s", "m0"))
    if re.search(r"\bexec\b", tok): out.add(("s", "exec"))
    return out

TRANS = ("v_exp_", "v_log_", "v_rcp_", "v_rsq_", "v_sqrt_", "v_sin_", "v_cos_")
class Ins:
    def __init__(s, text):
        s.text = text
        t = text.split(";")[0].strip()
        s.op = t.split()[0] if t else ""
        rest = t[len(s.op):]
        ops = [o.strip() for o in rest.split(",")] if rest.strip() else []
        s.ops = ops
        op = s.op
        s.is_label = t.endswith(":") or t.startswith(".")
        s.mfma = op.startswith("v_mfma")
        s.valu = op.startswith("v_") and not s.mfma
        s.trans = op.startswith(TRANS)
        s.salu = op.startswith("s_")
        s.ds = op.startswith("ds_")
        s.vmem = op.startswith(("buffer_", "global_"))
        s.dma = s.vmem and re.search(r"\blds\b", t) is not None
        s.store = s.vmem and ("store" in op or "atomic" in op)
        s.wr = set(); s.rd = set(); s.srcC = set(); s.srcAB = set(); s.stdata = set()
        s.passes = 0
        if s.is_label or not op: return
        R = [regs_of(o) for o in ops]
        if s.mfma:
            s.wr = R[0]; s.srcAB = R[1] | R[2]; s.srcC = R[3]; s.rd = s.srcAB | s.srcC
            s.passes = 4 if "16x16" in op else 8
        elif s.valu:
            if op.startswith("v_cmp"):
                s.wr = R[0]; s.rd = set().union(*R[1:])
            elif op.startswith("v_permlane"):
                s.wr = R[0] | R[1]; s.rd = R[0] | R[1]
            elif op.startswith(("v_add_co", "v_sub_co", "v_addc_co")):
                s.wr = R[0] | R[1]; s.rd = set().union(*R[2:])
            else:
                s.wr = R[0]; s.rd = set().union(*R[1:]) if len(R) > 1 else set()
                if op.startswith(("v_fmac", "v_mac", "v_writelane")): s.rd |= R[0]
        elif s.ds:
            if "read" in op:
                s.wr = R[0]; s.rd = set().union(*R[1:]) if len(R) > 1 else set()
            else:
                s.rd = set().union(*R)
            if "addtid" in op: s.rd.add(("s", "m0"))
        elif s.vmem:
            if op in ("buffer_inv", "buffer_wbl2"): pass
            elif s.dma:
                s.rd = set().union(*R); s.rd.add(("s", "m0"))
            elif s.store:
                s.rd = set().union(*R)
                s.stdata = R[0] if op.startswith("buffer_") else R[1]
            else:
                s.wr = R[0]; s.rd = set().union(*R[1:])
        elif s.salu:
            if op.startswith(("s_cmp", "s_cbranch", "s_branch", "s_waitcnt", "s_barrier", "s_nop", "s_setprio", "s_endpgm", "s_sleep")):
                s.rd = set().union(*R) if R else set()
            else:
                s.wr = R[0] if R else set(); s.rd = set().union(*R[1:]) if len(R) > 1 else set()
    def states(s):
        if s.is_label or not s.op: return 0
        if s.op == "s_nop": return int(s.ops[0]) + 1
        return 1

def V(x): return {r for r in x if r[0] == "v"}
def S(x): return {r for r in x if r[0] == "s"}

def need(p, c):
    n = 0
    if p.valu and c.mfma and V(p.wr) & c.rd: n = max(n, 2)
    if p.mfma:
        far = 12 if p.passes == 8 else 8
        if c.mfma:
            if p.wr & c.srcAB: n = max(n, far)
            if p.wr & c.srcC:
                if not (p.wr == c.srcC and p.passes == c.passes): n = max(n, far - 2)
            if (p.wr & c.wr) and not (p.wr & c.srcC): n = max(n, 0)
        elif (c.valu or c.ds or c.vmem) and (p.wr & (c.rd | c.wr)): n = max(n, far)
        if c.valu and (p.srcC & c.wr): n = max(n, 7 if p.passes == 8 else 3)
    if p.trans and c.valu and not c.trans and V(p.wr) & c.rd: n = max(n, 1)
    if p.trans and c.trans and V(p.wr) & c.rd: n = max(n, 1)
    if p.valu and S(p.wr):
        if c.vmem and S(p.wr) & c.rd: n = max(n, 5)
        if c.valu and S(p.wr) & c.rd: n = max(n, 4 if c.op.startswith(("v_readlane", "v_writelane")) else 2)
        if c.salu and S(p.wr) & c.rd: n = max(n, 2)
        if c.op.startswith("s_cbranch_vcc") and ("s", "vcc") in p.wr: n = max(n, 2)
    if p.valu and c.op.startswith(("v_readlane", "v_readfirstlane")) and V(p.wr) & c.rd: n = max(n, 1)
    if p.valu and c.op.startswith("v_permlane") and V(p.wr) & c.rd: n = max(n, 2)
    if p.valu and "dpp" in c.text and V(p.wr) & c.rd: n = max(n, 2)
    if p.salu and ("s", "m0") in p.wr and ("s", "m0") in c.rd and (c.dma or c.ds): n = max(n, 1)
    if p.store and len(p.stdata) >= 3 and (c.wr & p.stdata): n = max(n, 2)
    return n

class Asm:
    def __init__(s):
        s.L = []
        s.vm = []
        s.lg = []
    def __call__(s, text, tag=None, maybe=False):
        for line in text.split("\n"):
            line = line.strip()
            if not line or line.startswith(";"): continue
            i = Ins(line)
            s.L.append(i)
            if i.vmem and i.op not in ("buffer_inv", "buffer_wbl2") and not maybe: s.vm.append(tag)
            if i.ds and not maybe: s.lg.append(tag)
    def label(s, name): s(name + ":")
    def _cnt(s, q, tags):
        if isinstance(tags, str): tags = [tags]
        idx = [k for k, t in enumerate(q) if t in tags]
        if not idx: return None
        return len(q) - 1 - max(idx)
    def wait_vm(s, tags):
        n = s._cnt(s.vm, tags)
        if n is None: return
        n = min(n, 63)
        s(f"s_waitcnt vmcnt({n})")
        s.vm = s.vm[len(s.vm) - n:] if n else []
    def wait_lg(s, tags):
        n = s._cnt(s.lg, tags)
        if n is None: return
        n = min(n, 15)
        s(f"s_waitcnt lgkmcnt({n})")
        s.lg = s.lg[len(s.lg) - n:] if n else []
    def wait_vm0(s): s("s_waitcnt vmcnt(0)"); s.vm = []
    def wait_lg0(s): s("s_waitcnt lgkmcnt(0)"); s.lg = []
    def state(s): return (list(s.vm), list(s.lg))
    def restore(s, st): s.vm, s.lg = list(st[0]), list(st[1])

def fix_hazards(L, window=24):
    out = []
    npad = 0
    for c in L:
        if not c.is_label and c.op:
            dist = 0; req = 0
            for p in reversed(out[-window * 2:]):
                if p.is_label or not p.op: continue
                k = need(p, c)
                if k > dist: req = max(req, k - dist)
                dist += p.states()
                if dist >= 20: break
            while req > 0:
                k = min(req, 16)
                out.append(Ins(f"s_nop {k-1}")); req -= k; npad += 1
        out.append(c)
    return out, npad

def text(L):
    return "\n".join((i.text if i.is_label else "    " + i.text) for i in L) + "\n"
```

```python
import sys, math
from emit import *

NAME = "gated_mix__mha_block__glu_gated_bilinear__prompt_kernel"
FL, G, F3, QF, KF, VF, OF, HF, WF, TS, WSN = 0, 0x8000, 0x10000, 0x50000, 0x2D0000, 0x550000, 0x7D0000, 0xA50000, 0x1110000, 0x1400000, 0x1500000
OOB = 0x40000000
HEADB = 81920
WSL = 24576; XR = 98304; RS = 98304; KV = 122880; ONES = 153600; RB = 40960
REDW = 5440; REDR = 272; RED = 2*RB; REDO = 54912
sX, sW1, sW2, sWS, sRP, sOUT, sDBG, sGW = 4, 8, 12, 16, 20, 24, 28, 32
W, RG, CH, MB = 36, 37, 38, 39
NB, NQ, AA, XCD, JJ, EE = 62, 63, 64, 65, 66, 67
T0, T1, T2, T3, T4 = 68, 69, 70, 71, 72
oX, oW1, oW2, mX, mW1, mW2, dW1 = 73, 74, 75, 76, 77, 78, 79
HH, QB, oKV, mKV, oWF, mB, oH = 80, 81, 82, 83, 84, 85, 86
SPIN, SCL, EPI, oRP, oO = 87, 88, 89, 90, 91
sTW = 24
UU, oT0, oT1, oT2, oT3 = 3, 84, 85, 86, 82
ROT, bW1, bW2 = 88, 90, 93
TSB = 40
SRD = lambda b: f"s[{b}:{b+3}]"
vXR = [4, 5, 6, 7]; vXD = [8, 9]; vW1D = [10, 11, 12]; vW2D = [13, 14, 15]; vW1R = [16, 17]; vW2R = [18, 19, 20]
vE0R = [16, 17, 12]
WB = [24, 36]; ACC = 48; XB = 96
vS = [24, 40]; vO = 56; vC = 72; vE = 88; vQ = 96; vK = [102, 108]; vV = [114, 122]; vP = 130
vG = 138; vG4 = 140; vHB = 148
vKR, vKr, vVR, vD4, vD1 = 4, 5, [6, 7, 8], 9, 10
vFLG, vPOL = 11, 12
bACC = 24; bWB = [44, 64]; bO = 96; vWR = 4

class Cfg:
    bpos = 1
    f1set = 13
    cnt_stage = 16
    diag = False
    prio = True
    f3step = 8
    f2poll = 4
    spin = 40000
    force_fallback = False
    touch = False
    rot = (5, 10)
    tfl = ''
    tcstage = 1
    f3poll = 20
    zrows = False
    tkv = True
    tcode = True
    codelen = 0
    nup = 2
    nomfma = False
    qstart = 0
    la = 3
    tb = (10, 10)
    tq = (0,)
    t2 = ((3, 0, 5), (5, 5, 10))
    twf = 99
CFG = Cfg()
nts = [0]
def clk(): return "s_memtime" if CFG.diag >= 2 else "s_memrealtime"
def stamp(a):
    if CFG.diag:
        a(f"{clk()} s[{TSB+2*nts[0]}:{TSB+2*nts[0]+1}]")
        nts[0] += 1

def xstamp(a, i):
    if CFG.diag in (1, 2): a(f"{clk()} s[{94+2*i}:{95+2*i}]")
def srd(a, b, lo, n):
    a(f"s_mov_b32 s{b}, s{lo}\ns_mov_b32 s{b+1}, s{lo+1}\ns_mov_b32 s{b+2}, {n}\ns_mov_b32 s{b+3}, 0x20000")
def srd_sel(a, b, loA, loB, nA, nB):
    a(f"s_cselect_b32 s{b}, s{loA}, s{loB}\ns_cselect_b32 s{b+1}, s{loA+1}, s{loB+1}")
    if nA == nB: a(f"s_mov_b32 s{b+2}, {nA}")
    else: a(f"s_mov_b32 s{T4}, {nB}\ns_cselect_b32 s{b+2}, {nA}, s{T4}")
    a(f"s_mov_b32 s{b+3}, 0x20000")

vTCH = 255
def prologue(a):
    a(f"""s_cmp_ge_u32 s2, 256
s_cbranch_scc1 L_end
{clk()+" s[92:93]" if CFG.diag else ""}
s_load_dwordx16 s[40:55], s[0:1], 0
s_load_dwordx4 s[56:59], s[0:1], 64
s_load_dwordx2 s[60:61], s[0:1], 80""")
    if CFG.tcode:
        a(f"""s_getpc_b64 s[4:5]
s_lshr_b32 s6, s2, 3
s_lshl_b32 s6, s6, 11
s_add_u32 s4, s4, s6
s_addc_u32 s5, s5, 0
v_lshrrev_b32 v1, 5, v0
v_lshlrev_b32 v1, 7, v1
v_mov_b32 v3, s5
v_add_co_u32 v2, vcc, s4, v1
v_addc_co_u32 v3, vcc, 0, v3, vcc
s_cmp_lt_u32 s6, {CFG.codelen-2048}
s_cbranch_scc0 L_nocode""")
        a(f"global_load_dword v{vTCH}, v[2:3], off", maybe=True)
        a.label("L_nocode")
    a(f"""v_lshrrev_b32 v1, 6, v0
v_and_b32 v0, 63, v0
v_readfirstlane_b32 s{W}, v1
s_and_b32 s{XCD}, s2, 7
s_lshr_b32 s{JJ}, s2, 3
s_and_b32 s{RG}, s{W}, 3
s_lshr_b32 s{CH}, s{W}, 2
s_and_b32 s{T0}, s{XCD}, 1
s_lshl_b32 s{T0}, s{T0}, 3
s_and_b32 s{QB}, s{JJ}, 7
s_add_u32 s{MB}, s{T0}, s{QB}
s_lshr_b32 s{NQ}, s{JJ}, 3
s_lshr_b32 s{EE}, s{XCD}, 1
s_lshl_b32 s{NB}, s{EE}, 2
s_add_u32 s{NB}, s{NB}, s{NQ}
s_mul_i32 s{AA}, s{EE}, 3
s_add_u32 s{AA}, s{AA}, s{NQ}
s_lshl_b32 s{HH}, s{XCD}, 2
s_add_u32 s{HH}, s{HH}, s{NQ}""")
    a(f"s_lshl_b32 s{UU}, s{JJ}, 3\ns_add_u32 s{UU}, s{UU}, s{W}")
    a(f"""s_lshl_b32 s{T0}, s{MB}, 7
s_lshl_b32 s{T1}, s{W}, 4
s_add_u32 s{T0}, s{T0}, s{T1}
v_lshrrev_b32 v1, 3, v0
v_add_u32 v1, s{T0}, v1
v_mul_u32_u24 v1, 1280, v1
v_lshrrev_b32 v2, 4, v0
v_and_b32 v3, 7, v0
v_xor_b32 v2, v2, v3
v_lshl_add_u32 v{vXD[0]}, v2, 4, v1
v_xor_b32 v{vXD[1]}, 64, v{vXD[0]}
v_add_u32 v{vXD[1]}, {8*1280-1024}, v{vXD[1]}
s_lshl_b32 s{mX}, s{W}, 11
s_add_u32 s{mX}, s{mX}, {XR}
s_mul_i32 s{T0}, s{QB}, {CFG.rot[0]}
s_lshr_b32 s{T0}, s{T0}, 2
s_mul_i32 s{T1}, s{NQ}, {CFG.rot[1]}
s_lshr_b32 s{T1}, s{T1}, 2
s_add_u32 s{ROT}, s{T0}, s{T1}
s_cmp_ge_u32 s{ROT}, 10
s_cselect_b32 s{T0}, 10, 0
s_sub_u32 s{ROT}, s{ROT}, s{T0}
s_lshl_b32 s{oX}, s{ROT}, 7
s_cmp_eq_u32 s{CH}, 0
s_waitcnt lgkmcnt(0)""")
    xstamp(a, 0)
    srd_sel(a, sW2, 48, 50, 2211840, 2211840)
    srd(a, sX, 40, 2621440); srd(a, sW1, 42, 2457600)
    dma_x(a, 0)

vTX, vTW, vTE, vT2 = 252, 253, 254, 3
def touch_setup(a):
    a(f"""s_and_b32 s{T0}, s{XCD}, 1
s_lshl_b32 s{T0}, s{T0}, 8
s_add_u32 s{T0}, s{T0}, s{UU}
s_mul_i32 s{oT0}, s{T0}, 5120
v_and_b32 v1, 3, v0
v_mul_u32_u24 v1, 1280, v1
v_lshrrev_b32 v2, 2, v0
v_lshl_add_u32 v{vTX}, v2, 7, v1
s_mul_i32 s{T0}, s{EE}, 960
s_and_b32 s{T0}, s{T0}, 0xffffff80
s_lshr_b32 s{T1}, s{UU}, 2
s_mul_i32 s{oT1}, s{T1}, 3840
s_add_u32 s{oT1}, s{oT1}, s{T0}
s_and_b32 s{T1}, s{UU}, 3
s_lshl_b32 s{T1}, s{T1}, 8
s_add_u32 s{oT1}, s{oT1}, s{T1}
v_lshrrev_b32 v1, 1, v0
v_and_b32 v2, 1, v0
v_mul_u32_u24 v1, {64*3840}, v1
v_lshl_add_u32 v{vTW}, v2, 7, v1
s_lshl_b32 s{T0}, s{JJ}, 2
s_add_u32 s{T0}, s{T0}, s{RG}
s_lshr_b32 s{T1}, s{T0}, 1
s_mul_i32 s{oT2}, s{T1}, 3456
s_and_b32 s{T0}, s{T0}, 1
s_mul_i32 s{T1}, s{EE}, 96
s_add_u32 s{T1}, s{T1}, 3072
s_and_b32 s{T1}, s{T1}, 0xffffff80
s_lshl_b32 s{T2}, s{T0}, 7
s_add_u32 s{T1}, s{T1}, s{T2}
s_add_u32 s{oT3}, s{T1}, s{oT2}
s_mul_i32 s{T1}, s{EE}, 768
s_mul_i32 s{T0}, s{T0}, 384
s_add_u32 s{oT2}, s{oT2}, s{T1}
s_add_u32 s{oT2}, s{oT2}, s{T0}
v_mul_u32_u24 v{vTE}, {64*3456}, v0""")
def touch_setup2(a):
    a(f"""v_lshrrev_b32 v1, 2, v0
v_and_b32 v2, 3, v0
v_mul_u32_u24 v1, {64*3456}, v1
v_lshl_add_u32 v{vT2}, v2, 7, v1""")
def setexec(m):
    if m < (1 << 31): return [(f"s_mov_b64 exec, {hex(m)}", None)]
    return [(f"s_mov_b32 exec_lo, {hex(m & 0xffffffff)}", None), (f"s_mov_b32 exec_hi, {hex(m >> 32)}", None)]
def touch1(s0, s1):
    if not CFG.touch or s0 >= s1: return []
    rng = lambda k: ((1 << (k * s1)) - 1) ^ ((1 << (k * s0)) - 1)
    ld = lambda v, srd_, so: (f"buffer_load_dword v{vTCH}, v{v}, {SRD(srd_)}, s{so} offen {CFG.tfl}", "t")
    return [setexec(rng(4)) + [ld(vTX, sX, oT0)] + setexec(rng(2)) + [ld(vTW, sTW, oT1), ("s_mov_b64 exec, -1", None)],
            setexec(rng(1)) + [ld(vTE, sW2, oT3), ("s_mov_b64 exec, -1", None)]]
def touch2(s0, s1):
    if not CFG.touch: return []
    m = sum(7 << (4 * k) for k in range(s0, s1))
    return [setexec(m) + [(f"buffer_load_dword v2, v{vT2}, {SRD(sW2)}, s{oT2} offen {CFG.tfl}", "t"), ("s_mov_b64 exec, -1", None)]]

def setup_rest(a):
    srd(a, sWS, 60, WSN); srd(a, sDBG, 58, 256)
    a(f"s_mov_b32 s{oKV+1}, s56\ns_mov_b32 s{SPIN}, s57")
    a(f"""s_lshl_b32 s{T0}, s{QB}, 3
s_add_u32 s{T0}, s{T0}, s{W}
s_lshl_b32 s{T0}, s{T0}, 5
s_add_u32 s{T0}, s{T0}, s{HH}
s_lshl_b32 s{T0}, s{T0}, 7
s_add_u32 s{T0}, s{T0}, {F3}
s_lshl_b32 s{T1}, s2, 7
s_cmp_eq_u32 s{W}, 0
s_cselect_b32 s{T1}, s{T1}, {OOB}
v_mov_b32 v21, {OOB}
v_writelane_b32 v21, s{T0}, 0
v_writelane_b32 v21, s{T1}, 1
v_mov_b32 v22, 0""")
    a(f"buffer_store_dword v22, v21, {SRD(sWS)}, 0 offen sc1", "zero")
    a(f"""s_mul_i32 s{T0}, s2, 6554
s_lshr_b32 s{T0}, s{T0}, 16
s_mul_i32 s{T1}, s{T0}, 3
s_add_u32 s{T1}, s{T1}, s{W}
s_cmp_ge_u32 s{T1}, 37
s_cselect_b32 s{T2}, 37, 0
s_sub_u32 s{T2}, s{T1}, s{T2}
s_cmp_lt_u32 s{T2}, 27""")
    srd_sel(a, sRP, 52, 44, 2211840, 819200)
    a(f"""v_and_b32 v1, 31, v0
v_lshrrev_b32 v2, 5, v0
v_bfe_u32 v3, v0, 1, 3
v_xor_b32 v3, v3, v2
s_lshl_b32 s{T0}, s{RG}, 12
s_add_u32 s{T0}, s{T0}, {XR}
v_lshl_add_u32 v1, v1, 7, s{T0}""")
    for j in range(4):
        a(f"v_xor_b32 v2, {2*j}, v3\nv_lshl_add_u32 v{vXR[j]}, v2, 4, v1")
    a(f"""s_mul_i32 s{T0}, s{RG}, 192
s_lshl_b32 s{T1}, s{CH}, 1""")
    for n in range(3):
        a(f"""v_add_u32 v1, s{T0}, v0
v_mul_u32_u24 v2, 5462, v1
v_lshrrev_b32 v2, 16, v2
v_mul_u32_u24 v3, 12, v2
v_sub_u32 v1, v1, v3
v_xor_b32 v1, s{T1}, v1
v_mul_u32_u24 v2, 3456, v2
v_lshl_add_u32 v{vW2D[n]}, v1, 4, v2""")
        if n: a(f"v_subrev_u32 v{vW2D[n]}, {1024*n}, v{vW2D[n]}")
        if n < 2: a(f"s_add_u32 s{T0}, s{T0}, 64")
    a(f"""s_mul_i32 s{mW2}, s{CH}, 12288
s_mul_i32 s{T0}, s{RG}, 3072
s_add_u32 s{mW2}, s{mW2}, s{T0}
s_mul_i32 s{bW2}, s{NB}, 192
s_mul_i32 s{oW2}, s{ROT}, {64*3456}
s_add_u32 s{oW2}, s{oW2}, s{bW2}""")
    a(f"""v_lshrrev_b32 v1, 5, v0
v_bfe_u32 v2, v0, 2, 2
v_lshl_add_u32 v21, v1, 3, v2
v_bfe_u32 v22, v0, 4, 1
v_and_b32 v23, 3, v0
v_mul_u32_u24 v1, 192, v21
v_mul_u32_u24 v2, 12288, v22
v_add_u32 v1, v1, v2
v_lshl_add_u32 v1, v23, 3, v1
v_add_u32 v1, {2*WSL}, v1
s_mul_i32 s{T0}, s{CH}, 3""")
    for u in range(3):
        a(f"v_xor_b32 v2, s{T0}, v22\nv_lshl_add_u32 v{vW2R[u]}, v2, 5, v1")
        if u < 2: a(f"s_add_u32 s{T0}, s{T0}, 1")

def dma_x(a, s):
    a(f"s_add_u32 m0, s{mX}, {(s%4)*16384}")
    a(f"buffer_load_dwordx4 v{vXD[0]}, {SRD(sX)}, s{oX} offen lds", f"x{s}")
    a(f"buffer_load_dwordx4 v{vXD[1]}, {SRD(sX)}, s{oX} offen offset:1024 lds", f"x{s}")
    for t, _ in adv(oX, 128, "0", s): a(t)
def adv(o, step, base, s):
    if s % 10 == 9: return []
    return [(f"s_add_u32 s{o}, s{o}, {step}", None), (f"s_cmp_eq_u32 s{ROT}, {9 - s % 10}", None), (f"s_cmov_b32 s{o}, {base}", None)]
def dma_w_groups(s, nW1):
    if s < 10:
        g = [[(f"s_add_u32 m0, s{mW1}, {(s%4)*WSL}", None)]]
        for n in range(nW1):
            g[-1].append((f"buffer_load_dwordx4 v{vW1D[n]}, {SRD(sW1)}, s{oW1} offen" + (f" offset:{1024*n}" if n else "") + " lds", f"w{s}"))
            if n < nW1 - 1: g.append([])
        g[-1] += adv(oW1, f"s{dW1}", f"s{bW1}", s)
    else:
        g = [[(f"s_add_u32 m0, s{mW2}, {(s%4)*WSL}", None)]]
        for n in range(3):
            g[-1].append((f"buffer_load_dwordx4 v{vW2D[n]}, {SRD(sW2)}, s{oW2} offen" + (f" offset:{1024*n}" if n else "") + " lds", f"w{s}"))
            if n < 2: g.append([])
        g[-1] += adv(oW2, 64*3456, f"s{bW2}", s)
    return g
def dma_x_groups(s):
    return [[(f"s_add_u32 m0, s{mX}, {(s%4)*16384}", None), (f"buffer_load_dwordx4 v{vXD[0]}, {SRD(sX)}, s{oX} offen lds", f"x{s}")],
            [(f"buffer_load_dwordx4 v{vXD[1]}, {SRD(sX)}, s{oX} offen offset:1024 lds", f"x{s}")] + adv(oX, 128, "0", s)]

class Var:
    def __init__(s, name, T, swap, nW1, kind): s.name, s.T, s.swap, s.nW1, s.kind = name, T, swap, nW1, kind
VARS = [Var("N3", 3, False, 2, "qk"), Var("N2", 2, False, 3, "qk"), Var("S3", 3, True, 2, "v"), Var("S2", 2, True, 3, "v"),
        Var("E0", 3, False, 2, "e0"), Var("E1", 1, False, 2, "e1")]

def reads_for(n, var):
    b = WB[n & 1]; j = n & 3
    out = []
    if n < 40:
        for t in range(var.T):
            L = []
            if var.kind in ("qk", "v"):
                if var.T == 3: reg, imm = vW1R[0], 80 * t
                elif t == 0: reg, imm = vW1R[0], 240
                else: reg, imm = vW1R[1], 0
                for rd in range(2): L.append((f"ds_read_b64_tr_b16 {vr(b+4*t+2*rd,2)}, v{reg} offset:{(16*j+4*rd)*320+imm}", f"f{n}_{t}"))
            elif var.kind == "e0":
                for rd in range(2): L.append((f"ds_read_b64_tr_b16 {vr(b+4*t+2*rd,2)}, v{vE0R[t]} offset:{(16*j+4*rd)*128}", f"f{n}_{t}"))
            else:
                L.append((f"ds_read_b128 {vr(b,4)}, v{vW1R[0]} offset:{32*n}", f"f{n}_{t}"))
            out.append(L)
        out[0].insert(0, (f"ds_read_b128 {vr(XB+4*n,4)}, v{vXR[j]} offset:{((n>>2)%4)*16384}", f"f{n}_0"))
    else:
        for t in range(3):
            out.append([(f"ds_read_b64_tr_b16 {vr(b+4*t+2*rd,2)}, v{vW2R[t]} offset:{(16*j+4*rd)*192}", f"f{n}_{t}") for rd in range(2)])
    return out

def bump_for(s_next, var):
    d = WSL if s_next % 4 else -3 * WSL
    op = lambda r: f"v_add_u32 v{r}, {d}, v{r}" if d > 0 else f"v_subrev_u32 v{r}, {-d}, v{r}"
    if s_next < 10:
        if var.kind == "e1": return []
        if var.kind == "e0": return [op(r) for r in vE0R]
        return [op(vW1R[0])] + ([op(vW1R[1])] if var.T == 2 else [])
    if s_next == 10 or s_next >= 20: return []
    return [op(r) for r in vW2R]

def p1_steps(a, n0, n1, var, queue, hooks):
    for n in range(n0, n1):
        s, j = n >> 2, n & 3
        T = var.T if n < 40 else 3
        nxt = reads_for(n + 1, var) if n + 1 < 80 else []
        b = WB[n & 1]; kx = XB + 4 * (n % 40)
        bp = min(CFG.bpos, T - 1) if j == 3 else -1
        pend = [x for x in nxt]
        if ("pre", n) in hooks:
            assert not queue, n
            hooks[("pre", n)](a)
        for t in range(T):
            if t == bp:
                a.wait_lg0()
                if CFG.diag == 3:
                    if s > 0: a(f"v_writelane_b32 v23, s94, {3*s-3}\nv_writelane_b32 v23, s96, {3*s-2}\nv_writelane_b32 v23, s98, {3*s-1}")
                    a("s_memtime s[94:95]")
                if s + 1 < 20: a.wait_vm([f"w{s+1}", f"x{s+1}"])
                if ("prebar", s) in hooks: hooks[("prebar", s)](a)
                if CFG.diag == 3: a("s_memtime s[96:97]")
                if s + 1 < 20 or ("postbar", s) in hooks: a("s_barrier")
                if CFG.diag == 3: a("s_memtime s[98:99]")
                for x in bump_for(s + 1, var): a(x)
                if ("postbar", s) in hooks: hooks[("postbar", s)](a)
                assert not queue, (s, var.name)
                if s + CFG.la < 20: queue += dma_w_groups(s + CFG.la, var.nW1)
                if s + CFG.la < 10: queue += dma_x_groups(s + CFG.la)
                if ("queue", s) in hooks: queue += hooks[("queue", s)]
                for k in range(t):
                    if pend:
                        for txt, tag in pend.pop(0): a(txt, tag)
            a.wait_lg(f"f{n}_{t}")
            A_, B_ = vr(b + 4 * t, 4), vr(kx, 4)
            if var.swap and n < 40: A_, B_ = B_, A_
            acc = vr(ACC + 16 * t, 16)
            if not CFG.nomfma or n % 40 == 0: a(f"v_mfma_f32_32x32x16_bf16 {acc}, {A_}, {B_}, {'0' if n % 40 == 0 else acc}")
            if j != 3 or t >= bp:
                k = 1 if t < T - 1 else len(pend)
                for _ in range(k):
                    if pend:
                        for txt, tag in pend.pop(0): a(txt, tag)
                ng = {3: 1, 2: 1, 1: 3}[T] * (2 if n < 3 or len(queue) > 6 else 1)
                if n < CFG.qstart: ng = 0
                elif n < 3 and CFG.qstart: ng = 9
                for _ in range(ng):
                    if queue:
                        for txt, tag in queue.pop(0): a(txt, tag)

def cvt8(a, r0, dst):
    for k in range(4): a(f"v_cvt_pk_bf16_f32 v{dst+k}, v{r0+2*k}, v{r0+2*k+1}")
def dummy_vm(a, n):
    for _ in range(n): a(f"buffer_load_dword v17, v2, {SRD(sGW)}, 0 offen", "st1")
def h_epilogue(a, tag):
    a(f"""v_bfe_u32 v1, v0, 4, 1
v_mul_u32_u24 v1, {54*1024}, v1
v_lshrrev_b32 v2, 5, v0
v_lshl_add_u32 v1, v2, 8, v1
v_and_b32 v2, 15, v0
v_lshl_add_u32 v1, v2, 4, v1""")
    for t in range(3):
        r0 = ACC + 16 * t
        for k in range(4): a(f"v_pk_mul_f32 {vr(r0+2*k,2)}, {vr(r0+2*k,2)}, {vr(r0+8+2*k,2)}")
        cvt8(a, r0, r0)
        a(f"buffer_store_dwordx4 {vr(r0,4)}, v1, {SRD(sWS)}, s{EPI} offen offset:{512*t} sc1", tag)

def variant(a, var):
    a.label(f"L_{var.name}")
    ch1 = var.T != 3
    srd(a, sTW, 42, 2457600)
    if var.kind in ("qk", "v"):
        a(f"s_mul_i32 s{T0}, s{RG}, {3 if ch1 else 2}")
        if ch1: a(f"s_add_u32 s{T0}, s{T0}, 8")
        a(f"s_lshl_b32 s{mW1}, s{T0}, 10\ns_lshl_b32 s{T0}, s{T0}, 6\ns_mul_i32 s{bW1}, s{AA}, 320\ns_mov_b32 s{dW1}, {64*3840}")
        for n in range(var.nW1):
            a(f"""v_add_u32 v1, s{T0}, v0
v_mul_u32_u24 v2, 3277, v1
v_lshrrev_b32 v2, 16, v2
v_mul_u32_u24 v3, 20, v2
v_sub_u32 v1, v1, v3
v_mul_u32_u24 v2, 3840, v2
v_lshl_add_u32 v{vW1D[n]}, v1, 4, v2""")
            if n: a(f"v_subrev_u32 v{vW1D[n]}, {1024*n}, v{vW1D[n]}")
            if n < var.nW1 - 1: a(f"s_add_u32 s{T0}, s{T0}, 64")
    else:
        a(f"s_mov_b32 s{sW1}, s{sW2}\ns_mov_b32 s{sW1+1}, s{sW2+1}\ns_mov_b32 s{sW1+2}, 2211840\ns_mov_b32 s{sW1+3}, 0x20000")
        a(f"""s_lshl_b32 s{mW1}, s{W}, 11
s_mul_i32 s{bW1}, s{EE}, 96
s_add_u32 s{bW1}, s{bW1}, 3072
s_mov_b32 s{dW1}, {64*3456}
s_lshl_b32 s{T0}, s{RG}, 4
v_lshrrev_b32 v1, 3, v0
v_add_u32 v1, s{T0}, v1
v_mul_u32_u24 v1, 3456, v1
v_bfe_u32 v3, v0, 4, 1
v_lshl_add_u32 v3, v3, 1, s{CH}
v_lshlrev_b32 v3, 1, v3
v_and_b32 v2, 7, v0
v_xor_b32 v2, v2, v3
v_lshl_add_u32 v{vW1D[0]}, v2, 4, v1
v_add_u32 v{vW1D[1]}, {8*3456-1024}, v{vW1D[0]}""")
    a(f"s_mul_i32 s{oW1}, s{ROT}, s{dW1}\ns_add_u32 s{oW1}, s{oW1}, s{bW1}")
    for g in dma_w_groups(0, var.nW1):
        for txt, tag in g: a(txt, tag)
    xstamp(a, 1)
    if CFG.touch: touch_setup(a)
    for g in touch1(1, CFG.tb[0]):
        for txt, tag in g: a(txt, tag)
    srd(a, sGW, 54, 1280)
    if var.kind == "e1":
        a(f"""v_lshlrev_b32 v1, 4, v0
v_lshlrev_b32 v2, 2, v0
s_mov_b32 m0, {WSL+16384}""")
        a(f"buffer_load_dwordx4 v1, {SRD(sGW)}, 0 offen lds", "gw")
        a(f"buffer_load_dword v2, {SRD(sGW)}, 0 offen offset:1024 lds", "gw")
        a(f"s_mov_b32 m0, {WSL+16384+1280}")
        a(f"buffer_load_dwordx4 v1, {SRD(sGW)}, 0 offen lds", "gw")
        a(f"buffer_load_dword v2, {SRD(sGW)}, 0 offen offset:1024 lds", "gw")
    xstamp(a, 2)
    setup_rest(a)
    if var.kind in ("qk", "v"):
        a(f"""v_mul_u32_u24 v1, 320, v21
v_lshl_add_u32 v2, v22, 2, v23
v_lshl_add_u32 v{vW1R[0]}, v2, 3, v1
v_add_u32 v{vW1R[0]}, 8, v{vW1R[0]}""")
        if ch1:
            a(f"""v_mul_u32_u24 v3, 40, v2
v_add_u32 v1, v1, v3
v_and_b32 v2, 1, v2
v_lshl_add_u32 v{vW1R[1]}, v2, 5, v1""")
    elif var.kind == "e0":
        a(f"""v_lshlrev_b32 v1, 7, v21
v_lshl_add_u32 v1, v22, 13, v1
v_lshl_add_u32 v1, v23, 3, v1
v_bfe_u32 v2, v0, 3, 1
v_lshl_add_u32 v2, v2, 1, v22""")
        for u in range(3): a(f"v_xor_b32 v3, {u}, v2\nv_lshl_add_u32 v{vE0R[u]}, v3, 5, v1")
    else:
        a(f"""v_lshrrev_b32 v1, 5, v0
v_lshlrev_b32 v1, 4, v1
s_lshl_b32 s{T0}, s{ROT}, 7
s_add_u32 s{T0}, s{T0}, {WSL+16384}
v_add_u32 v{vW1R[0]}, s{T0}, v1""")
    a(f"""s_and_b32 s{T0}, s2, 1
s_lshl_b32 s{T0}, s{T0}, 7
s_cmp_eq_u32 s{W}, 0
s_cselect_b32 s{T0}, s{T0}, {OOB}
v_mov_b32 v22, {OOB}
v_writelane_b32 v22, s{T0}, 0
v_mov_b32 v21, 1""")
    if CFG.touch: touch_setup2(a)
    for s in range(1, CFG.nup):
        dma_x(a, s)
        for g in dma_w_groups(s, var.nW1):
            for txt, tag in g: a(txt, tag)
    xstamp(a, 3)
    a.wait_vm(["w0", "x0", "gw"])
    a("s_barrier")
    stamp1(a)
    for L in reads_for(0, var):
        for txt, tag in L: a(txt, tag)
    queue = touch1(CFG.tb[0], CFG.tb[1])
    for s in range(CFG.nup, CFG.la): queue += dma_w_groups(s, var.nW1) + dma_x_groups(s)
    hooks = {("prebar", 2): lambda a: a.wait_vm("zero"),
             ("postbar", 2): lambda a: a(f"buffer_atomic_add v21, v22, {SRD(sDBG)}, 0 offen sc1", "atom"),
             ("queue", CFG.tq[0]): touch1(CFG.tb[1], 10)}
    for k, (st, s0, s1) in enumerate(CFG.t2): hooks[("queue", st)] = hooks.get(("queue", st), []) + touch2(s0, s1)
    p1_steps(a, 0, 40, var, queue, hooks)
    for g in queue:
        for txt, tag in g: a(txt, tag)
    if var.kind == "qk":
        a(f"""s_lshr_b32 s{T0}, s{AA}, 2
s_cmp_eq_u32 s{T0}, 0
s_mov_b32 s{EPI}, {KF}
s_cselect_b32 s{EPI}, {QF}, s{EPI}
s_cbranch_scc0 L_{var.name}_noscale
v_mov_b32 v2, {hex(f2u(math.log2(math.e)/math.sqrt(20.0)))}
v_mov_b32 v3, v2""")
        for t in range(var.T):
            for k in range(8): a(f"v_pk_mul_f32 {vr(ACC+16*t+2*k,2)}, {vr(ACC+16*t+2*k,2)}, v[2:3]")
        a.label(f"L_{var.name}_noscale")
    elif var.kind == "v":
        a(f"s_mov_b32 s{EPI}, {VF}")
    if var.kind in ("qk", "v"):
        a(f"""s_and_b32 s{T0}, s{AA}, 3
s_lshl_b32 s{T0}, s{T0}, 9
s_lshl_b32 s{T1}, s{MB}, 2
s_add_u32 s{T0}, s{T0}, s{T1}
s_add_u32 s{T0}, s{T0}, s{RG}
s_mul_i32 s{T0}, s{T0}, 1280
s_add_u32 s{EPI}, s{EPI}, s{T0}""")
    if var.kind == "qk":
        a("v_lshlrev_b32 v1, 4, v0")
        if ch1:
            a(f"""v_lshrrev_b32 v2, 5, v0
v_mul_u32_u24 v2, {HEADB}, v2
v_and_b32 v3, 31, v0
v_lshl_add_u32 v2, v3, 3, v2""")
        for t in range(var.T):
            r0 = ACC + 16 * t
            if ch1 and t == 1:
                for q in range(4):
                    a(f"v_cvt_pk_bf16_f32 v{r0+4*q}, v{r0+4*q}, v{r0+4*q+1}\nv_cvt_pk_bf16_f32 v{r0+4*q+1}, v{r0+4*q+2}, v{r0+4*q+3}")
                    a(f"s_add_u32 s{T0}, s{EPI}, {2*q*HEADB}")
                    a(f"buffer_store_dwordx2 {vr(r0+4*q,2)}, v2, {SRD(sWS)}, s{T0} offen offset:1024 sc1", "st1")
            else:
                tt = 3 if ch1 else t
                for hf in range(2):
                    cvt8(a, r0 + 8 * hf, r0 + 8 * hf)
                    a(f"s_add_u32 s{T0}, s{EPI}, {(2*tt+hf)*HEADB}")
                    a(f"buffer_store_dwordx4 {vr(r0+8*hf,4)}, v1, {SRD(sWS)}, s{T0} offen sc1", "st1")
    elif var.kind == "v":
        a(f"""v_lshrrev_b32 v3, 5, v0
v_bfe_u32 v1, v0, 4, 1
v_mul_u32_u24 v1, {HEADB}, v1
v_lshl_add_u32 v1, v3, 8, v1
v_and_b32 v2, 15, v0
v_lshl_add_u32 v1, v2, 4, v1""")
        if ch1:
            a(f"""v_bfe_u32 v2, v0, 2, 3
v_mul_u32_u24 v2, {HEADB}, v2
v_lshl_add_u32 v2, v3, 6, v2
v_and_b32 v3, 3, v0
v_lshl_add_u32 v2, v3, 4, v2""")
        for t in range(var.T):
            r0 = ACC + 16 * t
            rem = ch1 and t == 1
            tt = 3 if ch1 else t
            a(f"s_add_u32 s{T0}, s{EPI}, {0 if rem else 2*tt*HEADB}")
            for sl in range(2):
                cvt8(a, r0 + 8 * sl, r0 + 8 * sl)
                a(f"buffer_store_dwordx4 {vr(r0+8*sl,4)}, v{2 if rem else 1}, {SRD(sWS)}, s{T0} offen offset:{640*sl+(512 if rem else 0)} sc1", "st1")
        if ch1:
            a(f"v_mov_b32 v2, {OOB}"); dummy_vm(a, 2)
    elif var.kind == "e0":
        a(f"""s_lshl_b32 s{T0}, s{MB}, 3
s_lshl_b32 s{T1}, s{RG}, 1
s_add_u32 s{T0}, s{T0}, s{T1}
s_mul_i32 s{T0}, s{T0}, {54*1024}
s_mul_i32 s{T1}, s{EE}, {3*512}
s_add_u32 s{T0}, s{T0}, s{T1}
s_add_u32 s{EPI}, s{T0}, {HF+96*512}""")
        h_epilogue(a, "st1")
        a(f"v_mov_b32 v2, {OOB}"); dummy_vm(a, 3)
    else:
        a(f"""v_cvt_pk_bf16_f32 v1, v{ACC}, v{ACC}
v_and_b32 v1, 0xffff0000, v1
v_mul_f32 v1, {hex(f2u(-math.log2(math.e)))}, v1
v_exp_f32 v1, v1
v_add_f32 v1, 1.0, v1
v_rcp_f32 v1, v1
v_cvt_pk_bf16_f32 v1, v1, v1
v_and_b32 v1, 0xffff0000, v1
s_lshl_b32 s{T0}, s{MB}, 2
s_add_u32 s{T0}, s{T0}, s{RG}
s_lshl_b32 s{T0}, s{T0}, 7
s_add_u32 s{T0}, s{T0}, {G}
s_cmp_eq_u32 s{EE}, 0
s_cselect_b32 s{T0}, s{T0}, {OOB}
v_and_b32 v2, 31, v0
v_lshlrev_b32 v2, 2, v2""")
        a(f"buffer_store_dword v1, v2, {SRD(sWS)}, s{T0} offen sc1", "st1")
        a(f"v_mov_b32 v2, {OOB}"); dummy_vm(a, 5)
    a("s_branch L_pass2")

import struct
def f2u(x): return struct.unpack("<I", struct.pack("<f", x))[0]
def stamp1(a):
    if CFG.diag: a(f"{clk()} s[{TSB+2}:{TSB+3}]")

def spin_ge(a, name, reg, val, reload):
    a(f"s_mov_b32 s{SPIN}, {CFG.spin}")
    a.label(f"L_{name}_chk")
    a(f"v_cmp_gt_u32 vcc, {val}, v{reg}\ns_cbranch_vccz L_{name}_ok\ns_sub_u32 s{SPIN}, s{SPIN}, 1\ns_cbranch_scc1 L_{name}_ok")
    st = a.state()
    reload(a); a("s_waitcnt vmcnt(0)\ns_branch L_" + name + "_chk")
    a.restore(st)
    a.label(f"L_{name}_ok")

def pass2(a):
    a.label("L_pass2")
    stamp(a)
    hooks = {}
    tq = XB
    def setup_att(a):
        a(f"s_mov_b32 s{sOUT}, s{oKV+1}\ns_mov_b32 s{sOUT+1}, s{SPIN}\ns_mov_b32 s{sOUT+2}, 2621440\ns_mov_b32 s{sOUT+3}, 0x20000")
        a(f"""v_lshlrev_b32 v{vD4}, 4, v0
v_lshlrev_b32 v{vD1}, 2, v0
v_add_u32 v{vKR}, {KV}, v{vD4}
v_and_b32 v1, 31, v0
v_lshrrev_b32 v2, 5, v0
v_lshlrev_b32 v{vKr}, 3, v1
v_add_u32 v{vKr}, {KV+1024}, v{vKr}
v_lshlrev_b32 v3, 8, v2
v_lshl_add_u32 v3, v1, 4, v3
v_lshlrev_b32 v21, 6, v2
v_lshl_add_u32 v21, v1, 4, v21
v_add_u32 v21, 256, v21
v_cmp_gt_u32 vcc, 16, v1
v_cndmask_b32 v3, v21, v3, vcc
v_add_u32 v3, {KV+5120}, v3
v_mov_b32 v21, {ONES}""")
        if CFG.zrows:
            a(f"""v_lshl_add_u32 v{vKr}, v2, 18, v{vKr}
v_mov_b32 v22, 0x40000
v_cmp_gt_u32 vcc, 21, v1
v_cndmask_b32 v21, v22, v21, vcc""")
        a("v_cmp_gt_u32 vcc, 20, v1")
        for st in range(3):
            a(f"v_cndmask_b32 v{vVR[st]}, v21, v3, vcc")
            if st < 2: a(f"v_add_u32 v3, 10240, v3")
        a(f"""v_and_b32 v1, 7, v0
v_mul_u32_u24 v1, 640, v1
v_add_u32 v1, {ONES}, v1
v_mov_b32 v2, 0x3f803f80
v_mov_b32 v3, v2""")
        a("ds_write_b64 v1, v[2:3]", "ones"); a("ds_write_b64 v1, v[2:3] offset:8", "ones")
        a(f"""s_lshl_b32 s{T0}, s2, 7
s_cmp_eq_u32 s{W}, 0
s_cselect_b32 s{T0}, s{T0}, {OOB}
v_mov_b32 v{vFLG}, {OOB}
v_writelane_b32 v{vFLG}, s{T0}, 0
v_and_b32 v1, 31, v0
s_lshl_b32 s{T0}, s{W}, 12
v_lshl_add_u32 v{vPOL}, v1, 7, s{T0}""")
    hooks[("pre", 40)] = setup_att
    def repack_dma(a):
        a(f"""s_mul_i32 s{T0}, s2, 6554
s_lshr_b32 s{T0}, s{T0}, 16
s_mul_i32 s{T1}, s{T0}, 10
s_sub_u32 s{T1}, s2, s{T1}
s_mul_i32 s{T0}, s{T0}, 3
s_add_u32 s{T0}, s{T0}, s{W}
s_cmp_ge_u32 s{T0}, 37
s_cselect_b32 s{T2}, 1, 0
s_mul_i32 s{T3}, s{T2}, 37
s_sub_u32 s{T3}, s{T0}, s{T3}
s_mul_i32 s{oRP}, s{T0}, 5120
s_add_u32 s{oRP}, s{oRP}, {WF}
s_cmp_lt_u32 s{W}, 3
s_cselect_b32 s{oRP}, s{oRP}, {OOB}
s_cmp_lt_u32 s{T0}, 74
s_cselect_b32 s{oRP}, s{oRP}, {OOB}
s_lshl_b32 s{oO}, s{T1}, 2""")
        a(f"""s_mul_i32 s{T0}, s{T2}, 27
s_add_u32 s{T0}, s{T0}, s{T3}
s_lshl_b32 s{T0}, s{T0}, 5
s_lshl_b32 s{T4}, s{T2}, 3
s_add_u32 s{T4}, s{T4}, s{T3}
s_sub_u32 s{T4}, s{T4}, 27
s_mul_i32 s{T4}, s{T4}, 40
s_add_u32 s{T4}, s{T4}, 4
s_cmp_lt_u32 s{T3}, 27
s_cselect_b32 s{T0}, s{T0}, s{T4}
s_lshl_b32 s{T4}, s{T2}, 1
s_add_u32 s{T4}, s{T4}, s{T3}
s_sub_u32 s{T4}, s{T4}, 35
s_mul_i32 s{T4}, s{T4}, 160
s_cmp_lt_u32 s{T3}, 35
s_cselect_b32 s{T0}, s{T0}, s{T4}
s_mov_b32 s{T2}, {36*1280}
s_cselect_b32 s{T2}, {4*1280}, s{T2}
s_mov_b32 s{T3}, {80*1280-1024}
s_cselect_b32 s{T3}, {8*1280-1024}, s{T3}
s_mov_b32 s{T4}, {40*1280-2048}
s_cselect_b32 s{T4}, {16*1280-2048}, s{T4}
s_mul_i32 s{T0}, s{T0}, 1280
s_lshl_b32 s{T1}, s{T1}, 7
s_add_u32 s{T0}, s{T0}, s{T1}
s_cmp_lt_u32 s{oRP}, {OOB}
s_cselect_b32 s{T0}, s{T0}, {OOB}
v_lshrrev_b32 v1, 5, v0
v_mul_lo_u32 v1, v1, s{T2}
v_bfe_u32 v2, v0, 3, 2
v_mul_u32_u24 v2, 1280, v2
v_add_u32 v1, v1, v2
v_and_b32 v2, 7, v0
v_lshl_add_u32 v1, v2, 4, v1
s_lshl_b32 s{T1}, s{W}, 12
s_add_u32 m0, s{T1}, {RS}
s_add_u32 s{T1}, s{T0}, s{T3}""")
        a(f"buffer_load_dwordx4 v1, {SRD(sRP)}, s{T0} offen lds", "rp")
        a(f"buffer_load_dwordx4 v1, {SRD(sRP)}, s{T1} offen offset:1024 lds", "rp")
        a(f"s_add_u32 s{T0}, s{T0}, s{T4}\ns_add_u32 s{T1}, s{T1}, s{T4}")
        a(f"buffer_load_dwordx4 v1, {SRD(sRP)}, s{T0} offen offset:2048 lds", "rp")
        a(f"buffer_load_dwordx4 v1, {SRD(sRP)}, s{T1} offen offset:3072 lds", "rp")
    hooks[("pre", 45)] = repack_dma
    def repack_read(a):
        a.wait_vm("rp")
        a(f"""v_lshrrev_b32 v1, 5, v0
v_bfe_u32 v2, v0, 2, 3
v_lshl_add_u32 v1, v1, 4, v2
v_lshlrev_b32 v1, 7, v1
v_and_b32 v2, 3, v0
v_lshl_add_u32 v1, v2, 3, v1
s_lshl_b32 s{T1}, s{W}, 12
s_add_u32 s{T1}, s{T1}, {RS}
v_add_u32 v1, s{T1}, v1""")
        for i4 in range(4):
            for rd in range(2): a(f"ds_read_b64_tr_b16 {vr(tq+4*i4+2*rd,2)}, v1 offset:{rd*1024+32*i4}", "rpr")
    hooks[("pre", 61)] = repack_read
    def repack_store(a):
        a.wait_lg("rpr")
        for i4 in range(4):
            a(f"""s_mul_i32 s{T0}, s{oO}, 13108
s_lshr_b32 s{T0}, s{T0}, 16
s_mul_i32 s{T1}, s{T0}, {74*5120-5*1024}
s_lshl_b32 s{T2}, s{oO}, 10
s_add_u32 s{T1}, s{T1}, s{T2}
s_add_u32 s{T1}, s{T1}, s{oRP}
s_add_u32 s{oO}, s{oO}, 1""")
            a(f"buffer_store_dwordx4 {vr(tq+4*i4,4)}, v{vD4}, {SRD(sWS)}, s{T1} offen sc1", "rps")
    hooks[("pre", 62)] = repack_store
    def set_f1(a):
        a("v_mov_b32 v1, 1")
        a(f"buffer_store_dword v1, v{vFLG}, {SRD(sWS)}, 0 offen sc1", "fl")
    hooks[("prebar", CFG.f1set)] = lambda a: a.wait_vm("st1")
    hooks[("postbar", CFG.f1set)] = set_f1
    c = CFG.cnt_stage
    ldc = lambda a: a(f"buffer_load_dword v22, v21, {SRD(sDBG)}, 0 offen sc1", "cnt")
    def cnt_issue(a):
        a("v_and_b32 v21, 1, v0\nv_lshlrev_b32 v21, 7, v21"); ldc(a)
    hooks[("pre", 4 * c + 1)] = cnt_issue
    ldf = lambda a: a(f"buffer_load_dword v22, v{vPOL}, {SRD(sWS)}, 0 offen sc1", "pol")
    def cnt_check(a):
        a.wait_vm("cnt"); spin_ge(a, "cnt", 22, 128, ldc); ldf(a)
    hooks[("pre", 4 * (c + 1) + 1)] = cnt_check
    def f1_check(a):
        a.wait_vm("pol"); spin_ge(a, "f1", 22, 1, ldf)
    hooks[("prebar", c + 1)] = f1_check
    def qkv_issue(a):
        a(f"""s_lshl_b32 s{T0}, s{HH}, 6
s_add_u32 s{T1}, s{T0}, s{RG}
s_mul_i32 s{T1}, s{T1}, 1280
s_cmp_eq_u32 s{CH}, 0
s_mov_b32 s{oKV}, {VF}
s_cselect_b32 s{oKV}, {KF}, s{oKV}
s_add_u32 s{oKV}, s{oKV}, s{T1}
s_mul_i32 s{mKV}, s{W}, 1280
s_add_u32 s{mKV}, s{mKV}, {KV}
s_lshl_b32 s{T1}, s{QB}, 3
s_add_u32 s{T0}, s{T0}, s{T1}
s_add_u32 s{T0}, s{T0}, s{W}
s_mul_i32 s{T0}, s{T0}, 1280
s_add_u32 s{T0}, s{T0}, {QF}
v_and_b32 v1, 31, v0
v_lshlrev_b32 v1, 3, v1
v_lshrrev_b32 v2, 5, v0
v_lshl_add_u32 v1, v2, 30, v1""")
        for txt, tag in sum(kv_dma(0), []): a(txt, tag)
        if CFG.tkv:
            a(f"""v_lshrrev_b32 v2, 4, v0
v_mul_u32_u24 v2, {VF-KF}, v2
v_and_b32 v3, 15, v0
v_lshl_add_u32 v2, v3, 7, v2
s_add_u32 s{T1}, s{T0}, {KF-QF}
s_mov_b64 exec, 0x03ff03ff""")
            a(f"buffer_load_dword v17, v2, {SRD(sWS)}, s{T1} offen sc1", "t")
            a("s_mov_b64 exec, -1")
        a(f"buffer_load_dwordx4 {vr(vQ,4)}, v{vD4}, {SRD(sWS)}, s{T0} offen sc1", "q")
        a(f"buffer_load_dwordx2 {vr(vQ+4,2)}, v1, {SRD(sWS)}, s{T0} offen offset:1024 sc1", "q")
        for txt, tag in sum(kv_dma(1), []): a(txt, tag)
    hooks[("postbar", c + 1)] = qkv_issue
    queue = []
    p1_steps(a, 40, 80, VARS[0], queue, hooks)
    assert not queue
    a(f"""s_lshl_b32 s{T0}, s{MB}, 3
s_lshl_b32 s{T1}, s{RG}, 1
s_add_u32 s{T0}, s{T0}, s{T1}
s_mul_i32 s{T0}, s{T0}, {54*1024}
s_mul_i32 s{T1}, s{NB}, {6*512}
s_add_u32 s{T0}, s{T0}, s{T1}
s_mul_i32 s{T1}, s{CH}, {3*512}
s_add_u32 s{T0}, s{T0}, s{T1}
s_add_u32 s{EPI}, s{T0}, {HF}""")
    h_epilogue(a, "st2")

def kv_dma(c):
    return [[(f"s_add_u32 m0, s{mKV}, {(c%3)*10240}", None), (f"buffer_load_dwordx4 v{vD4}, {SRD(sWS)}, s{oKV} offen sc1 lds", f"kv{c}")],
            [(f"buffer_load_dword v{vD1}, {SRD(sWS)}, s{oKV} offen offset:1024 sc1 lds", f"kv{c}"), (f"s_add_u32 s{oKV}, s{oKV}, 5120", None)]]
def wf_dma(rho):
    g = [[(f"s_add_u32 m0, s{mB}, {(rho%4)*RB}", None)]]
    for n in range(4):
        g[-1].append((f"buffer_load_dwordx4 v{vD4}, {SRD(sWS)}, s{oWF} offen" + (f" offset:{1024*n}" if n else "") + " sc1 lds", f"r{rho}")); g.append([])
    g[-1] = [(f"s_add_u32 m0, m0, 4096", None), (f"s_add_u32 s{T0}, s{oWF}, 4096", None),
             (f"buffer_load_dwordx4 v{vD4}, {SRD(sWS)}, s{T0} offen sc1 lds", f"r{rho}"), (f"s_add_u32 s{oWF}, s{oWF}, {4*5120}", None)]
    return g

def k_reads(n):
    st, t = (n >> 2) % 3, n & 3; b = vK[n & 1]
    return [(f"ds_read_b128 {vr(b,4)}, v{vKR} offset:{st*10240+t*1280}", f"k{n}"), (f"ds_read_b64 {vr(b+4,2)}, v{vKr} offset:{st*10240+t*1280}", f"k{n}")]
def v_reads(n):
    st, t = (n >> 2) % 3, n & 3; b = vV[n & 1]
    return [(f"ds_read_b128 {vr(b+4*s,4)}, v{vVR[st]} offset:{t*1280+s*640}", f"v{n}_{s}") for s in range(2)]
def qk0(n, C): return f"v_mfma_f32_32x32x16_bf16 {vr(vS[n&1],16)}, {vr(vK[n&1],4)}, {vr(vQ,4)}, {C}"
def qk1(n): return f"v_mfma_f32_32x32x8bf16_1k {vr(vS[n&1],16)}, {vr(vK[n&1]+4,2)}, {vr(vQ+4,2)}, {vr(vS[n&1],16)}"
def pv(n, s, first=False): return f"v_mfma_f32_32x32x16_bf16 {vr(vO,16)}, {vr(vV[n&1]+4*s,4)}, {vr(vP+4*s,4)}, {'0' if first else vr(vO,16)}"

def attention(a):
    stamp(a)
    if CFG.diag == 3:
        a(f"s_lshl_b32 s{T0}, s2, 3\ns_add_u32 s{T0}, s{T0}, s{W}\ns_lshl_b32 s{T0}, s{T0}, 8\ns_add_u32 s{T0}, s{T0}, {TS+0x20000}\nv_writelane_b32 v23, s92, 63\nbuffer_store_dword v23, v{vD1}, {SRD(sWS)}, s{T0} offen", maybe=True)
    E = lambda n, j: f"v_exp_f32 v{vE+(j%8)}, v{vS[n&1]+j}"
    C = lambda j: f"v_cvt_pk_bf16_f32 v{vP+j}, v{vE+(2*j)%8}, v{vE+(2*j+1)%8}"
    a(f"""s_mul_i32 s{T0}, s{QB}, 74
s_mul_i32 s{T1}, s{CH}, 37
s_add_u32 s{T0}, s{T0}, s{T1}
s_add_u32 s{T0}, s{T0}, s{RG}
s_mul_i32 s{T0}, s{T0}, 5120
s_add_u32 s{oWF}, s{T0}, {WF}
s_mul_i32 s{mB}, s{W}, 5120
s_lshl_b32 s{T0}, s{HH}, 2
s_add_u32 s{T0}, s{T0}, s{RG}
s_mul_i32 s{T0}, s{T0}, 54
s_mul_i32 s{T1}, s{CH}, 27
s_add_u32 s{T0}, s{T0}, s{T1}
s_lshl_b32 s{T0}, s{T0}, 10
s_add_u32 s{oH}, s{T0}, {HF}""")
    a.wait_vm(["q", "kv0"])
    a("s_barrier")
    for x in k_reads(0) + k_reads(1) + v_reads(0): a(*x)
    a.wait_lg("k0")
    a(qk0(0, "0")); a(qk1(0))
    s0 = vS[0]
    a(f"v_max3_f32 v1, v{s0}, v{s0+1}, v{s0+2}\nv_max3_f32 v2, v{s0+3}, v{s0+4}, v{s0+5}")
    for k in range(6, 14, 4): a(f"v_max3_f32 v1, v1, v{s0+k}, v{s0+k+1}\nv_max3_f32 v2, v2, v{s0+k+2}, v{s0+k+3}")
    a(f"v_max3_f32 v1, v1, v{s0+14}, v{s0+15}\nv_max_f32 v1, v1, v2\nv_mov_b32 v2, v1\nv_permlane32_swap_b32 v1, v2\nv_max_f32 v1, v1, v2")
    a(f"v_sub_f32 v{vC}, 0, v1")
    for k in range(1, 16): a(f"v_mov_b32 v{vC+k}, v{vC}")
    for k in range(0, 16, 2): a(f"v_pk_add_f32 {vr(s0+k,2)}, {vr(s0+k,2)}, {vr(vC,2)}")
    stamp(a)
    queue = []
    NT = 64
    ldf = lambda a: a(f"buffer_load_dword v22, v{vPOL}, {SRD(sWS)}, 0 offen sc1", "pol2")
    def slot():
        if queue:
            for txt, tag in queue.pop(0): a(txt, tag)
    hl = []
    for p in range(27):
        g = []
        g.append((f"buffer_load_dwordx4 {vr(vHB+4*p,4)}, v{vD4}, {SRD(sWS)}, s{oH} offen" + (f" offset:{1024*(p&3)}" if p & 3 else "") + " sc1", f"h{p}"))
        if p & 3 == 3: g.append((f"s_add_u32 s{oH}, s{oH}, 4096", None))
        hl.append(g)
    later = []
    for n in range(NT):
        c, t = n >> 2, n & 3
        if t == 2 and c + 1 < 16:
            assert not queue, n
            a.wait_vm(f"kv{c+1}")
            if c == 1: a.wait_vm(["st2", "rps"])
            if c == CFG.f2poll + 1:
                a.wait_vm("pol2"); spin_ge(a, "f2", 22, 2, ldf)
            a("s_barrier")
            if CFG.prio: a("s_setprio 1")
            if c + 2 < 16: queue += kv_dma(c + 2)
            if c == 1:
                queue.append([("v_mov_b32 v1, 2", None), (f"buffer_store_dword v1, v{vFLG}, {SRD(sWS)}, 0 offen sc1", "fl2")])
            if c == CFG.f2poll:
                queue.append([(f"buffer_load_dword v22, v{vPOL}, {SRD(sWS)}, 0 offen sc1", "pol2")])
            if c == CFG.f2poll + 1:
                gq = [(f"s_lshl_b32 s{T0}, s{QB}, 3", None), (f"s_add_u32 s{T0}, s{T0}, s{W}", None), (f"s_lshl_b32 s{T0}, s{T0}, 7", None),
                      (f"s_add_u32 s{T0}, s{T0}, {G}", None), ("v_and_b32 v1, 31, v0", None), ("v_lshlrev_b32 v1, 2, v1", None),
                      (f"buffer_load_dword v{vG}, v1, {SRD(sWS)}, s{T0} offen sc1", "g"),
                      (f"s_lshl_b32 s{T0}, s{HH}, 2", None), (f"s_add_u32 s{T0}, s{T0}, s{RG}", None), (f"s_lshl_b32 s{T0}, s{T0}, 6", None),
                      (f"s_add_u32 s{T0}, s{T0}, {G}", None), ("v_and_b32 v1, 48, v0", None),
                      (f"buffer_load_dwordx4 {vr(vG4,4)}, v1, {SRD(sWS)}, s{T0} offen sc1", "g")]
                later = [gq] + wf_dma(0) + hl[:9] + wf_dma(1) + hl[9:18] + wf_dma(2) + hl[18:]
                nchunks = 15 - c
                per = [later[0:6], later[6:11], later[11:15], later[15:20], later[20:25], later[25:29], later[29:34]]
                rest = later[34:]
                k = max(nchunks - len(per), 1)
                per += [rest[i*len(rest)//k:(i+1)*len(rest)//k] for i in range(k)]
                later = per
            if later and c >= CFG.f2poll + 1: queue += later.pop(0)
            if c == CFG.twf:
                queue.append([(f"s_lshr_b32 s{T0}, s{UU}, 4", None), (f"s_mul_i32 s{T0}, s{T0}, {37*5120}", None), (f"s_and_b32 s{T1}, s{UU}, 15", None),
                              (f"s_mul_i32 s{T1}, s{T1}, {63*128}", None), (f"s_add_u32 s{T0}, s{T0}, s{T1}", None), (f"s_add_u32 s{T0}, s{T0}, {WF+12*5120}", None),
                              ("v_lshlrev_b32 v1, 7, v0", None), (f"buffer_load_dword v17, v1, {SRD(sWS)}, s{T0} offen sc1", "t")])
        if CFG.prio and t == 1 and n > 1: a("s_setprio 0")
        last = n == NT - 1
        kr = k_reads(n + 2) if n + 2 < NT else []
        vrd = v_reads(n + 1) if not last else []
        if not last:
            a.wait_lg(f"k{n+1}")
            a(qk0(n + 1, vr(vC, 16)))
        if kr: a(*kr[0])
        if n > 0: a(C(6)); a(C(7))
        for j in range(4): a(E(n, j))
        if n > 0:
            a.wait_lg(f"v{n-1}_1")
            a(pv(n - 1, 1))
        if kr: a(*kr[1])
        slot()
        a(C(0)); a(C(1))
        for j in range(4, 8): a(E(n, j))
        if not last: a(qk1(n + 1))
        if vrd: a(*vrd[0])
        a(C(2)); a(C(3))
        for j in range(8, 12): a(E(n, j))
        a.wait_lg(f"v{n}_0")
        a(pv(n, 0, n == 0))
        if vrd: a(*vrd[1])
        slot()
        a(C(4)); a(C(5))
        for j in range(12, 16): a(E(n, j))
    a(C(6)); a(C(7))
    a.wait_lg(f"v{NT-1}_1")
    a(pv(NT - 1, 1))
    for g in queue + sum(later, []):
        for txt, tag in g: a(txt, tag)
    if CFG.prio: a("s_setprio 0")
    a(f"""v_bfe_u32 v1, v0, 4, 1
v_mul_u32_u24 v1, 20480, v1
v_and_b32 v2, 15, v0
v_lshrrev_b32 v3, 5, v0
v_lshl_add_u32 v21, v2, 3, v1
v_lshl_add_u32 v21, v3, 30, v21
v_lshl_add_u32 v23, v2, 4, v1
v_lshl_add_u32 v23, v3, 8, v23
s_lshl_b32 s{T0}, s{QB}, 3
s_add_u32 s{T0}, s{T0}, s{W}
s_mul_i32 s{T1}, s{T0}, 40960
s_add_u32 s{T1}, s{T1}, {OF}
s_lshl_b32 s{T2}, s{HH}, 9
s_add_u32 s{T2}, s{T2}, s{T1}
s_lshl_b32 s{T3}, s{HH}, 7
s_add_u32 s{T3}, s{T3}, s{T1}
s_add_u32 s{T3}, s{T3}, 16384
s_lshl_b32 s{T0}, s{T0}, 5
s_add_u32 s{T0}, s{T0}, s{HH}
s_lshl_b32 s{T0}, s{T0}, 7
s_add_u32 s{EPI}, s{T0}, {F3}
s_mov_b32 s{SCL}, {hex(f2u(2.0**100))}""")
    a(f"v_mul_f32 v1, 0, v{vO}\nv_mul_f32 v2, 0, v{vO+1}")
    for k in range(2, 12, 2): a(f"v_fma_f32 v1, v{vO+k}, 0, v1\nv_fma_f32 v2, v{vO+k+1}, 0, v2")
    a(f"""v_add_f32 v1, v1, v2
v_mov_b32 v2, v{vO+8}
v_mov_b32 v3, v{vO+8}
v_permlane32_swap_b32 v2, v3
v_add_f32 v1, v1, v3
v_cmp_nge_f32 vcc, s{SCL}, v1""")
    if CFG.force_fallback: a("s_branch L_fallback")
    else: a("s_cbranch_vccnz L_fallback")
    a.label("L_norm")
    a.wait_vm("g")
    a(f"v_rcp_f32 v2, v3\nv_mul_f32 v2, v2, v{vG}\nv_mov_b32 v3, v2")
    for k in range(0, 12, 2): a(f"v_pk_mul_f32 {vr(vO+k,2)}, {vr(vO+k,2)}, v[2:3]")
    cvt8(a, vO, vO)
    a(f"buffer_store_dwordx4 {vr(vO,4)}, v23, {SRD(sWS)}, s{T2} offen sc1", "ost")
    a(f"v_cvt_pk_bf16_f32 v{vO+8}, v{vO+8}, v{vO+9}\nv_cvt_pk_bf16_f32 v{vO+9}, v{vO+10}, v{vO+11}")
    a(f"buffer_store_dwordx2 {vr(vO+8,2)}, v21, {SRD(sWS)}, s{T3} offen sc1", "ost")
    stamp(a)

def fallback(a):
    a.label("L_fallback")
    s0 = vS[0]; k0 = vK[0]; v0_ = vV[0]; M, AL = vE, vE + 1
    a(f"""s_mul_i32 s{T0}, s{HH}, {HEADB}
s_add_u32 s{T1}, s{T0}, {VF}
s_add_u32 s{T0}, s{T0}, {KF}
v_and_b32 v1, 31, v0
v_lshlrev_b32 v{vE+2}, 3, v1
v_subrev_u32 v{vE+3}, {KV+5120}, v{vVR[0]}
v_mov_b32 v2, {OOB}
v_cmp_gt_u32 vcc, 20, v1
v_cndmask_b32 v{vE+3}, v2, v{vE+3}, vcc
v_mov_b32 v2, 0x3f803f80
v_cndmask_b32 v{vE+4}, v2, 0, vcc
v_mov_b32 v{M}, 0xff800000
s_mov_b32 s{SPIN}, 64""")
    for k in range(16): a(f"v_mov_b32 v{vO+k}, 0")
    a.label("L_fb_loop")
    a(f"""buffer_load_dwordx4 {vr(k0,4)}, v{vD4}, {SRD(sWS)}, s{T0} offen sc1
buffer_load_dwordx2 {vr(k0+4,2)}, v{vE+2}, {SRD(sWS)}, s{T0} offen offset:1024 sc1
buffer_load_dwordx4 {vr(v0_,4)}, v{vE+3}, {SRD(sWS)}, s{T1} offen sc1
buffer_load_dwordx4 {vr(v0_+4,4)}, v{vE+3}, {SRD(sWS)}, s{T1} offen offset:640 sc1
s_add_u32 s{T0}, s{T0}, 1280
s_add_u32 s{T1}, s{T1}, 1280
s_waitcnt vmcnt(0)""", maybe=True)
    a(qk0(0, "0")); a(qk1(0))
    for k in range(8): a(f"v_or_b32 v{v0_+k}, v{v0_+k}, v{vE+4}")
    a(f"v_max3_f32 v1, v{s0}, v{s0+1}, v{M}")
    for k in range(2, 16, 2): a(f"v_max3_f32 v1, v1, v{s0+k}, v{s0+k+1}")
    a(f"""v_mov_b32 v2, v1
v_permlane32_swap_b32 v1, v2
v_max_f32 v1, v1, v2
v_sub_f32 v{AL}, v{M}, v1
v_exp_f32 v{AL}, v{AL}
v_mov_b32 v{M}, v1""")
    for k in range(16): a(f"v_sub_f32 v{s0+k}, v{s0+k}, v1\nv_exp_f32 v{s0+k}, v{s0+k}\nv_mul_f32 v{vO+k}, v{vO+k}, v{AL}")
    for k in range(8): a(f"v_cvt_pk_bf16_f32 v{vP+k}, v{s0+2*k}, v{s0+2*k+1}")
    a(pv(0, 0)); a(pv(0, 1))
    a(f"s_nop 15\ns_sub_u32 s{SPIN}, s{SPIN}, 1\ns_cmp_lg_u32 s{SPIN}, 0\ns_cbranch_scc1 L_fb_loop")
    a(f"v_mov_b32 v2, v{vO+8}\nv_mov_b32 v3, v{vO+8}\nv_permlane32_swap_b32 v2, v3\ns_nop 1\ns_branch L_norm")

def b_reads(p):
    b = bWB[p & 1]
    return [(f"ds_read_b128 {vr(b+4*t,4)}, v{vWR} offset:{(p&3)*5120+t*1024}", f"b{p}_{t}") for t in range(5)]
def outproj(a):
    NP = 37
    def gaddr(chi0, vl, vg):
        a(f"""s_lshl_b32 s{T0}, s{W}, 6
s_add_u32 s{T0}, s{T0}, {chi0}
v_add_u32 v1, s{T0}, v0
v_mul_u32_u24 v2, 6554, v1
v_lshrrev_b32 v2, 16, v2
v_mul_u32_u24 v3, 10, v2
v_sub_u32 v1, v1, v3
v_lshrrev_b32 v3, 4, v2
v_mul_u32_u24 v3, {REDW}, v3
v_lshrrev_b32 v14, 1, v1
v_and_b32 v15, 3, v2
v_lshl_add_u32 v14, v14, 2, v15
v_mul_u32_u24 v14, {REDR}, v14
v_add3_u32 v3, v3, v14, s{SCL}
v_bfe_u32 v14, v2, 2, 2
v_lshl_add_u32 v3, v14, 6, v3
v_and_b32 v14, 1, v1
v_lshl_add_u32 v{vl}, v14, 5, v3
v_mul_u32_u24 v2, 1280, v2
v_lshl_add_u32 v{vg}, v1, 4, v2""")
    a(f"""s_mul_i32 s{T0}, s{CH}, {4*5120}
v_add_u32 v{vWR}, s{T0}, v{vD4}
s_mov_b32 s{SCL}, {RED}
v_mov_b32 v5, {OOB}
v_writelane_b32 v5, 0, 0
v_mov_b32 v6, 1""")
    a.wait_vm(["r0", "h0"])
    a("s_barrier")
    queue = wf_dma(3)
    for x in b_reads(0): a(*x)
    act = lambda p: vHB + 4 * p if p < 27 else bO + 4 * (p - 27)
    for p in range(NP):
        rho, j = p >> 2, p & 3
        nxt = b_reads(p + 1) if p + 1 < NP else []
        if p == CFG.f3step:
            a.wait_vm("ost")
            a(f"buffer_store_dword v6, v5, {SRD(sWS)}, s{EPI} offen sc1", "f3")
        ld3 = lambda a: a(f"buffer_load_dword v22, v7, {SRD(sWS)}, 0 offen sc1", "pol3")
        if p == CFG.f3poll - 2:
            a(f"""s_lshl_b32 s{T0}, s{HH}, 1
s_lshr_b32 s{T1}, s{RG}, 1
s_add_u32 s{T0}, s{T0}, s{T1}
s_lshl_b32 s{T0}, s{T0}, 1
s_add_u32 s{T0}, s{T0}, s{CH}
s_lshl_b32 s{T0}, s{T0}, 11
s_add_u32 s{T0}, s{T0}, {F3}
v_and_b32 v1, 15, v0
v_lshl_add_u32 v7, v1, 7, s{T0}
v_lshrrev_b32 v2, 4, v0
v_lshlrev_b32 v2, 7, v2
v_lshl_add_u32 v8, v1, 3, v2""")
            ld3(a)
        if p == CFG.f3poll:
            stamp(a)
            a(f"""s_lshl_b32 s{T4}, s{HH}, 2
s_add_u32 s{T4}, s{T4}, s{RG}
s_mul_i32 s{T4}, s{T4}, 20480
s_add_u32 s{T4}, s{T4}, {OF}
s_lshl_b32 s{T1}, s{CH}, 13
s_add_u32 s{T1}, s{T1}, s{T4}
s_add_u32 s{T2}, s{T1}, 4096
s_lshl_b32 s{T3}, s{CH}, 11
s_add_u32 s{T3}, s{T3}, s{T4}
s_add_u32 s{T3}, s{T3}, 16384""")
            a.wait_vm("pol3"); spin_ge(a, "f3", 22, 1, ld3)
            stamp(a)
            for i in range(8):
                a(f"buffer_load_dwordx4 {vr(bO+4*i,4)}, v{vD4}, {SRD(sWS)}, s{T1 if i < 4 else T2} offen offset:{1024*(i&3)} sc1", f"h{27+i}")
            for i in range(2):
                for rd in range(2):
                    a(f"buffer_load_dwordx2 {vr(bO+32+4*i+2*rd,2)}, v8, {SRD(sWS)}, s{T3} offen offset:{1024*i+512*rd} sc1", f"h{35+i}")
            for r in range(4):
                a(f"v_sub_f32 v{vG4+r}, 1.0, v{vG4+r}\nv_cvt_pk_bf16_f32 v{vG4+r}, v{vG4+r}, v{vG4+r}\nv_and_b32 v{vG4+r}, 0xffff0000, v{vG4+r}")
            gaddr(0, 10, 11); gaddr(512, 12, 13)
            a(f"""s_mul_i32 s{oO}, s{W}, {REDW}
s_add_u32 s{oO}, s{oO}, {RED-REDO}
s_mul_i32 s{oRP}, s{HH}, {64*1280}
s_mul_i32 s{T3}, s{QB}, 160
s_add_u32 s{oRP}, s{oRP}, s{T3}""")
        if p == 27:
            for t in range(5):
                for r in range(0, 4, 2): a(f"v_pk_mul_f32 {vr(bACC+4*t+r,2)}, {vr(bACC+4*t+r,2)}, {vr(vG4+r,2)}")
        a.wait_vm(f"h{p}")
        bp = 2 if (j == 3 and nxt) else -1
        pend = list(nxt)
        for t in range(5):
            if t == bp:
                a.wait_lg0()
                assert not queue, p
                a.wait_vm(f"r{rho+1}")
                a("s_barrier")
                d = RB if (rho + 1) % 4 else -3 * RB
                a(f"v_add_u32 v{vWR}, {d}, v{vWR}" if d > 0 else f"v_subrev_u32 v{vWR}, {-d}, v{vWR}")
                if rho + 4 < 9: queue += wf_dma(rho + 4)
                elif rho + 4 == 9:
                    a(f"s_cmp_eq_u32 s{RG}, 0\ns_cselect_b32 s{oWF}, s{oWF}, {OOB}")
                    queue += wf_dma(9)
                for k in range(t): a(*pend.pop(0))
            a.wait_lg(f"b{p}_{t}")
            acc = vr(bACC + 4 * t, 4)
            a(f"v_mfma_f32_16x16x32_bf16 {acc}, {vr(act(p),4)}, {vr(bWB[p&1]+4*t,4)}, {'0' if p == 0 else acc}")
            if pend and (bp < 0 or t >= bp): a(*pend.pop(0))
            if queue and t in (1, 3) and (bp < 0 or t > bp):
                for txt, tag in queue.pop(0): a(txt, tag)
    assert not queue
    stamp(a)
    a(f"s_mov_b32 m0, s{oO}")
    for t in range(5):
        for r in range(4): a(f"ds_write_addtid_b32 v{bACC+4*t+r} offset:{REDO+(4*t+r)*REDR}", "red")
    a.wait_lg0()
    a("s_barrier")
    def gather(vl, vg, b):
        for k in range(4): a(f"ds_read_b128 {vr(b+4*k,4)}, v{vl} offset:{(k>>1)*4*REDW+(k&1)*16}", f"g{b}")
    def finish(vg, b):
        a.wait_lg(f"g{b}")
        for k in range(0, 8, 2): a(f"v_pk_add_f32 {vr(b+k,2)}, {vr(b+k,2)}, {vr(b+8+k,2)}")
        cvt8(a, b, b + 16)
        a(f"buffer_store_dwordx4 {vr(b+16,4)}, v{vg}, {SRD(sOUT)}, s{oRP} offen", "out")
    gather(10, 11, 44)
    a(f"s_cmp_lt_u32 s{W}, 2\ns_cbranch_scc1 L_two")
    st = a.state()
    finish(11, 44)
    a("s_branch L_fin")
    a.restore(st)
    a.label("L_two")
    gather(12, 13, 64); finish(11, 44); finish(13, 64)
    a.label("L_fin")
    if CFG.diag:
        stamp(a)
        a(f"s_waitcnt vmcnt(0)")
        stamp(a)
        a(f"s_waitcnt lgkmcnt(0)\ns_lshl_b32 s{T0}, s2, 3\ns_add_u32 s{T0}, s{T0}, s{W}\ns_lshl_b32 s{T0}, s{T0}, 6\ns_add_u32 s{T0}, s{T0}, {TS}\nv_mov_b32 v1, 0")
        for k in range(nts[0]): a(f"v_writelane_b32 v1, s{TSB+2*k if k else 92}, {k}")
        if CFG.diag in (1, 2):
            for k in range(4): a(f"v_writelane_b32 v1, s{94+2*k}, {11+k}")
        a(f"v_lshlrev_b32 v2, 2, v0\ns_mov_b64 exec, 0xffff\nbuffer_store_dword v1, v2, {SRD(sWS)}, s{T0} offen")

def build():
    nts[0] = 0
    a = Asm()
    prologue(a)
    if CFG.diag:
        nts[0] = 2
    a(f"""s_cmp_eq_u32 s{NQ}, 3
s_cbranch_scc1 L_selE
s_cmp_ge_u32 s{AA}, 8
s_cbranch_scc1 L_selS
s_cmp_eq_u32 s{CH}, 0
s_cbranch_scc1 L_N3
s_branch L_N2""")
    a.label("L_selS")
    a(f"s_cmp_eq_u32 s{CH}, 0\ns_cbranch_scc1 L_S3\ns_branch L_S2")
    a.label("L_selE")
    a(f"s_cmp_eq_u32 s{CH}, 0\ns_cbranch_scc1 L_E0\ns_branch L_E1")
    st = a.state(); ends = []
    for v in VARS:
        a.restore(st); variant(a, v); ends.append(a.state())
    NE = 6 + 3 * (CFG.la - 1)
    for e in ends[1:]:
        assert e[0][-NE:] == ends[0][0][-NE:] and e[1] == ends[0][1], (e, ends[0])
    a.restore((ends[0][0][-NE:], ends[0][1]))
    pass2(a)
    attention(a)
    outproj(a)
    a("s_endpgm")
    fallback(a)
    a.label("L_end")
    L, npad = fix_hazards(a.L)
    return L, npad

HEAD = """; Fused kernel: out = g * MHA(x) + (1 - g) * GLU(x).  One persistent workgroup per CU (256 x 512 threads):
;   phase 2  attention, one (head, 256 queries) per workgroup; exp2 with Q pre-scaled, denominator through a ones row of V
; Kernarg: x, wqkv, wo, (unused), w_gate, w_up, w_down, gate_w, out, debug, ws
; @launch grid=(256,1,1) block=(512,1,1) lds=163840
.amdgcn_target "amdgcn-amd-amdhsa--gfx950"
.text
.globl {n}
.p2align 8
.type {n},@function
{n}:
"""
TAIL = """    s_endpgm
.section .rodata,"a"
.p2align 6
.amdhsa_kernel {n}
  .amdhsa_next_free_vgpr 256
  .amdhsa_next_free_sgpr 102
  .amdhsa_accum_offset 256
  .amdhsa_group_segment_fixed_size 0
  .amdhsa_kernarg_size 88
  .amdhsa_user_sgpr_count 2
  .amdhsa_user_sgpr_kernarg_segment_ptr 1
  .amdhsa_system_sgpr_workgroup_id_x 1
.end_amdhsa_kernel
"""
def code_bytes(L):
    import subprocess, tempfile, os, re
    with tempfile.TemporaryDirectory() as d:
        open(d + "/a.s", "w").write('.amdgcn_target "amdgcn-amd-amdhsa--gfx950"\n.text\n' + text(L))
        subprocess.run(["clang", "-x", "assembler", "-target", "amdgcn-amd-amdhsa", "-mcpu=gfx950", "-c", d + "/a.s", "-o", d + "/a.o"], check=True)
        o = subprocess.run(["llvm-objdump", "-h", d + "/a.o"], capture_output=True, text=True).stdout
        return int(re.search(r"\.text\s+([0-9a-f]+)", o).group(1), 16)
def generate(**kw):
    for k, v in kw.items():
        assert hasattr(Cfg, k), k
        setattr(CFG, k, v)
    CFG.codelen = 1 << 20
    L, npad = build()
    CFG.codelen = code_bytes(L)
    L, npad = build()
    return HEAD.format(n=NAME) + text(L) + TAIL.format(n=NAME), len(L), npad

if __name__ == "__main__":
    kw = {}
    out = "gated_mix__mha_block__glu_gated_bilinear__prompt.s"
    for x in sys.argv[1:]:
        if "=" in x:
            k, v = x.split("="); kw[k] = eval(v)
        else: out = x
    s, n, npad = generate(**kw)
    open(out, "w").write(s)
    print(f"wrote {out}: {n} lines, {npad} hazard pads, {len(s)} bytes")
```
